```python
import torch

def _softmax(x, axis=-1):
    return torch.softmax(x, dim=axis)
def _gelu(x):
    return torch.nn.functional.gelu(x, approximate="tanh")
def _silu(x):
    return torch.nn.functional.silu(x)
def _sigmoid(x):
    return torch.sigmoid(x)
def _layernorm(x, axis=-1, eps=1e-5):
    m = x.mean(dim=axis, keepdim=True)
    v = x.var(dim=axis, keepdim=True, unbiased=False)
    return (x - m) / torch.sqrt(v + eps)
def _scatter_add(tgt, idx, src, axis=0):
    return tgt.clone().index_add_(axis, idx, src)
def _segment_sum(src, seg, n):
    out = torch.zeros((n,) + src.shape[1:], dtype=src.dtype)
    return out.index_add_(0, seg, src)
def _pad(x, pw):
    flat = tuple(v for pair in reversed(pw) for v in pair)
    return torch.nn.functional.pad(x, flat)

kernel_name = 'recurrent_scan__gqa_block_cached__dense_activation_relu__decode'

def setup_inputs():

    _w = (lambda a: (lambda t: t.to(torch.bfloat16) if t.is_floating_point() else t)(torch.as_tensor(a)))
    def _A_setup():
        B, Sq, D = 2, 1, 512
        Hq, Hkv, Sk, Dh = 32, 8, 32768, 128
        assert Hq % Hkv == 0, (Hq, Hkv)
        return {
            "x": _w((lambda *s: torch.randn(*s, dtype=torch.bfloat16) * 0.05)(B, Sq, D)),
            "k_cache": _w((lambda *s: torch.randn(*s, dtype=torch.bfloat16) * 0.8)(B, Hkv, Sk, Dh)),
            "v_cache": _w((lambda *s: torch.randn(*s, dtype=torch.bfloat16) * 0.8)(B, Hkv, Sk, Dh)),
            "wq": _w((lambda *s: torch.randn(*s, dtype=torch.bfloat16) * 0.8)(D, Hq * Dh) * (D ** -0.5)),
            "wo": _w((lambda *s: torch.randn(*s, dtype=torch.bfloat16) * 0.8)(Hq * Dh, D) * ((Hq * Dh) ** -0.5)),
        }
    _A_in = _A_setup()

    def _B_setup():
        B, S, D, Dff = 2, 1, 512, 1792
        return {
            "x": _w((lambda *s: torch.randn(*s, dtype=torch.bfloat16) * 0.05)(B, S, D)),
            "w1": _w((lambda *s: torch.randn(*s, dtype=torch.bfloat16) * 0.2)(D, Dff)),
            "w2": _w((lambda *s: torch.randn(*s, dtype=torch.bfloat16) * 0.2)(Dff, D)),
        }
    _B_in = _B_setup()

    return {
        "A_x": _A_in["x"],
        "A_k_cache": _A_in["k_cache"],
        "A_v_cache": _A_in["v_cache"],
        "A_wq": _A_in["wq"],
        "A_wo": _A_in["wo"],
        "B_x": _B_in["x"],
        "B_w1": _B_in["w1"],
        "B_w2": _B_in["w2"],
    }

def reference(A_x, A_k_cache, A_v_cache, A_wq, A_wo, B_x, B_w1, B_w2):
    def _A_ref(x, k_cache, v_cache, wq, wo):
        B, Sq, D = x.shape
        Hq, Dh = 32, 128
        Hkv = k_cache.shape[1]
        rep = Hq // Hkv
        q = (lambda x, *d: x.permute(*d))((x @ wq).reshape(B, Sq, Hq, Dh), 0, 2, 1, 3)
        k = (lambda x, n, axis: torch.repeat_interleave(x, n, dim=axis))(k_cache, rep, axis=1)
        v = (lambda x, n, axis: torch.repeat_interleave(x, n, dim=axis))(v_cache, rep, axis=1)
        scores = torch.einsum("bhqd,bhkd->bhqk", q, k) * (Dh ** -0.5)
        p = _softmax(scores, axis=-1)
        o = torch.einsum("bhqk,bhkd->bhqd", p, v)
        return (lambda x, *d: x.permute(*d))(o, 0, 2, 1, 3).reshape(B, Sq, Hq * Dh) @ wo

    def _B_ref(x, w1, w2):
        h = torch.einsum("bsd,df->bsf", x, w1)
        zero = torch.zeros_like(h)
        h = torch.maximum(h, zero)
        return torch.einsum("bsf,fd->bsd", h, w2)

    x = A_x
    xn = _layernorm(x, axis=-1)
    s = _A_ref(xn, A_k_cache, A_v_cache, A_wq, A_wo)
    g = _silu(_B_ref(xn, B_w1, B_w2))
    return x + s * g
```

```python
import sys, struct
NAME='recurrent_scan__gqa_block_cached__dense_activation_relu__decode'
OUT='cdna_kernels/'+NAME+'.s'

def f2u(f): return struct.unpack('<I',struct.pack('<f',f))[0]

class G:
    def __init__(s):
        s.L=[]; s.vm=[]
    def e(s,x): s.L.append('    '+x)
    def lab(s,x): s.L.append(x+':')
    def c(s,x): s.L.append('    ; '+x)
    def vmem(s,tag,x):
        s.e(x); s.vm.append(tag)
    def wait(s,tag):
        if tag not in s.vm: return
        idx=len(s.vm)-1-s.vm[::-1].index(tag)
        n=len(s.vm)-idx-1
        n=min(n,63)
        s.e(f's_waitcnt vmcnt({n})')
        s.vm=s.vm[idx+1:]
    def nop(s,n):
        while n>0:
            k=min(n,8); s.e(f's_nop {k-1}'); n-=k

g=G()
e=g.e

RING0=104; NSLOT=32
def slot(i): return RING0+4*(i%NSLOT)
def vr(a,n): return f'v[{a}:{a+n-1}]'
S0=40
OACC=32
QOP=16
WO=232
SRD_K='s[8:11]'; SRD_V='s[12:15]'; SRD_WQ='s[16:19]'; SRD_WO='s[20:23]'; SRD_X='s[24:27]'
SRD_W1='s[28:31]'; SRD_W2='s[32:35]'; SRD_OUT='s[36:39]'; SRD_DBG='s[40:43]'; SRD_WS='s[44:47]'
L_XNT=0; L_QP=2048; L_QB=10240; L_OA=12288; L_ST=28672; L_OB=28928; LDS_SZ=32768
WS_L1=0; WS_L2=0x100000; WS_FF=0x180000; WS_SZ=0x200000
CEXP=1.4426950408889634/ (128**0.5)
SPIN=1<<18

def red_sum_full(v,t):
    e(f's_nop 1')
    e(f'v_add_f32 {v}, {v}, {v} quad_perm:[1,0,3,2] row_mask:0xf bank_mask:0xf')
    e(f's_nop 1')
    e(f'v_add_f32 {v}, {v}, {v} quad_perm:[2,3,0,1] row_mask:0xf bank_mask:0xf')
    e(f's_nop 1')
    e(f'v_add_f32 {v}, {v}, {v} row_half_mirror row_mask:0xf bank_mask:0xf')
    e(f's_nop 1')
    e(f'v_add_f32 {v}, {v}, {v} row_mirror row_mask:0xf bank_mask:0xf')
    red_x16_32(v,t,'v_add_f32')

def red_x16_32(v,t,op):
    e(f'v_mov_b32 {t}, {v}')
    e(f's_nop 1')
    e(f'v_permlane16_swap_b32 {v}, {t}')
    e(f's_nop 1')
    e(f'{op} {v}, {v}, {t}')
    e(f'v_mov_b32 {t}, {v}')
    e(f's_nop 1')
    e(f'v_permlane32_swap_b32 {v}, {t}')
    e(f's_nop 1')
    e(f'{op} {v}, {v}, {t}')

def multi_red(vs,ts,dpps,op='v_add_f32',x16=True,x32=True):
    for d in dpps:
        e('s_nop 1')
        for v in vs:
            e(f'{op} {v}, {v}, {v} {d} row_mask:0xf bank_mask:0xf')
    for sw,en in (('v_permlane16_swap_b32',x16),('v_permlane32_swap_b32',x32)):
        if not en: continue
        for v,t in zip(vs,ts): e(f'v_mov_b32 {t}, {v}')
        e('s_nop 1')
        for v,t in zip(vs,ts): e(f'{sw} {v}, {t}')
        e('s_nop 1')
        for v,t in zip(vs,ts): e(f'{op} {v}, {v}, {t}')

def bf16_round_f32(dst,src):
    e(f'v_cvt_pk_bf16_f32 {dst}, {src}, {src}')
    e(f'v_and_b32 {dst}, 0xffff0000, {dst}')

def sanitize(v):
    e(f'v_min_u32 {v}, 0xfffffffe, {v}')

def kload(i):
    t=i>>2; st=i&3
    if st==0: e(f's_mov_b32 s48, {t*4096}')
    g.vmem(('K',i), f'buffer_load_dwordx4 {vr(slot(i),4)}, v2, {SRD_K}, s48 offen offset:{st*64} nt')
def vload(c):
    if (c&3)==0: e(f's_mov_b32 s49, {(c>>2)*4096}')
    g.vmem(('V',c), f'buffer_load_dwordx4 {vr(slot(c),4)}, v3, {SRD_V}, s49 offen offset:{(c&3)*1024} nt')

e('s_cmp_ge_u32 s2, 0x100')
e('s_cbranch_scc1 L_END')
e('s_load_dwordx16 s[64:79], s[0:1], 0')
e('s_load_dwordx4 s[80:83], s[0:1], 64')
e('s_load_dwordx2 s[84:85], s[0:1], 80')
e('v_lshrrev_b32 v8, 6, v0')
e('v_and_b32 v1, 63, v0')
e('s_and_b32 s4, s2, 7')
e('s_bfe_u32 s5, s2, 0x10003')
e('s_lshr_b32 s6, s2, 4')
e('v_readfirstlane_b32 s3, v8')
e('s_lshl_b32 s7, s5, 26')
e('s_lshl_b32 s50, s4, 23')
e('s_add_u32 s7, s7, s50')
e('s_lshl_b32 s50, s6, 19')
e('s_add_u32 s7, s7, s50')
e('s_lshl_b32 s51, s6, 3')
e('s_add_u32 s51, s51, s4')
e(f's_mov_b32 s52, 0x{f2u(CEXP):08x}')
e('v_and_b32 v8, 15, v1')
e('v_lshrrev_b32 v9, 4, v1')
e('v_and_b32 v10, 3, v8')
e('v_lshrrev_b32 v11, 2, v8')
e('v_lshl_add_u32 v10, v10, 2, v11')
e('v_lshlrev_b32 v10, 8, v10')
e('v_lshl_add_u32 v2, v9, 4, v10')
e('s_lshl_b32 s50, s3, 16')
e('v_add_u32 v2, s50, v2')
e('v_lshlrev_b32 v3, 4, v1')
e('v_add_u32 v3, s50, v3')
e('v_and_b32 v10, 1, v8')
e('v_lshlrev_b32 v10, 4, v10')
e('v_mov_b32 v11, 0xffff')
e('v_lshlrev_b32 v11, v10, v11')
e('v_and_b32 v10, 2, v8')
e('v_cmp_eq_u32 vcc, 0, v10')
e('s_nop 1')
e('v_cndmask_b32 v4, 0, v11, vcc')
e('v_cndmask_b32 v5, v11, 0, vcc')
e('s_waitcnt lgkmcnt(0)')
def srd(base,lo,hi,size,off=None):
    if off is None:
        e(f's_mov_b32 s{base}, s{lo}'); e(f's_mov_b32 s{base+1}, s{hi}')
    else:
        e(f's_add_u32 s{base}, s{lo}, {off}'); e(f's_addc_u32 s{base+1}, s{hi}, 0')
    e(f's_mov_b32 s{base+2}, 0x{size:x}'); e(f's_mov_b32 s{base+3}, 0x00020000')
srd(8,66,67,524288,'s7'); srd(12,68,69,524288,'s7')
srd(16,70,71,4194304); srd(20,72,73,4194304); srd(24,64,65,2048)
srd(28,76,77,1835008); srd(32,78,79,1835008); srd(36,80,81,2048); srd(40,82,83,256); srd(44,84,85,WS_SZ)

def addr_l1(dst):
    e('s_and_b32 s50, s2, 15'); e('s_lshl_b32 s50, s50, 16')
    e('s_lshl_b32 s53, s6, 8'); e('s_add_u32 s50, s50, s53')
    e(f'v_lshrrev_b32 {dst}, 5, v0'); e(f'v_lshlrev_b32 {dst}, 12, {dst}')
    e(f'v_and_b32 v255, 31, v0'); e(f'v_lshl_add_u32 {dst}, v255, 2, {dst}')
    e(f'v_add_u32 {dst}, s50, {dst}')
def addr_l2(dst):
    e('s_lshl_b32 s50, s5, 18'); e('s_lshl_b32 s53, s51, 4'); e('s_add_u32 s50, s50, s53')
    e(f's_add_u32 s50, s50, 0x{WS_L2:x}')
    e(f'v_lshrrev_b32 {dst}, 2, v0'); e(f'v_lshlrev_b32 {dst}, 11, {dst}')
    e(f'v_and_b32 v255, 3, v0'); e(f'v_lshl_add_u32 {dst}, v255, 2, {dst}')
    e(f'v_add_u32 {dst}, s50, {dst}')
def addr_ff(dst):
    e('s_lshl_b32 s50, s5, 18'); e('s_lshl_b32 s53, s51, 4'); e('s_add_u32 s50, s50, s53')
    e(f's_add_u32 s50, s50, 0x{WS_FF:x}')
    e(f'v_lshlrev_b32 {dst}, 12, v1'); e(f'v_add_u32 {dst}, s50, {dst}')

g.c('sentinel clears')
for r in range(12,16): e(f'v_mov_b32 v{r}, -1')
addr_l1('v8')
g.vmem('clr',f'buffer_store_dword v12, v8, {SRD_WS}, 0 offen sc0 sc1')
e('v_cmp_eq_u32 vcc, 0, v255')
e('s_and_saveexec_b64 s[56:57], vcc')
g.vmem('clr',f'buffer_store_dwordx2 v[12:13], v8, {SRD_WS}, 0 offen offset:128 sc0 sc1')
e('s_mov_b64 exec, s[56:57]')
addr_l2('v9')
g.vmem('clr',f'buffer_store_dword v12, v9, {SRD_WS}, 0 offen sc0 sc1')

e('s_cmp_lt_u32 s3, 4'); e('s_cbranch_scc1 L_ROLE_Q')
e('s_cmp_gt_u32 s3, 4'); e('s_cbranch_scc1 L_ROLE_K')
e('s_cmp_lt_u32 s51, 112'); e('s_cbranch_scc1 L_ROLE_F')
vm_pre=list(g.vm)

g.lab('L_ROLE_K')
for i in range(32): kload(i)
e('s_waitcnt vmcnt(32)')
e('s_branch L_BAR1')

def layernorm():
    for k in range(4):
        e(f'v_lshlrev_b32 v{16+2*k}, 16, v{8+k}')
        e(f'v_and_b32 v{17+2*k}, 0xffff0000, v{8+k}')
    e('v_add_f32 v24, v16, v17'); e('v_add_f32 v25, v18, v19'); e('v_add_f32 v26, v20, v21'); e('v_add_f32 v27, v22, v23')
    e('v_add_f32 v24, v24, v25'); e('v_add_f32 v26, v26, v27'); e('v_add_f32 v24, v24, v26')
    red_sum_full('v24','v25')
    e(f'v_mul_f32 v24, 0x{f2u(1/512):08x}, v24')
    e('v_mov_b32 v26, 0')
    for k in range(8):
        e(f'v_sub_f32 v25, v{16+k}, v24'); e('v_fmac_f32 v26, v25, v25')
    red_sum_full('v26','v25')
    e(f'v_mul_f32 v26, 0x{f2u(1/512):08x}, v26')
    bf16_round_f32('v26','v26')
    e(f'v_add_f32 v26, 0x{f2u(1e-5):08x}, v26')
    bf16_round_f32('v26','v26')
    e('v_sqrt_f32 v26, v26'); e('s_nop 0')
    bf16_round_f32('v26','v26')
    e('v_rcp_f32 v26, v26')
    bf16_round_f32('v24','v24')
    for k in range(8):
        e(f'v_sub_f32 v{16+k}, v{16+k}, v24')
        bf16_round_f32(f'v{16+k}',f'v{16+k}')
        e(f'v_mul_f32 v{16+k}, v{16+k}, v26')
        e(f'v_cvt_pk_bf16_f32 v{16+k}, v{16+k}, v{16+k}')
    e('v_lshlrev_b32 v27, 3, v1')
    for gg in range(4):
        e(f'v_mov_b32 v28, v{16+gg}'); e(f'v_mov_b32 v29, v{20+gg}')
        e(f'ds_write_b64 v27, v[28:29] offset:{L_XNT+gg*512}')
    e('s_waitcnt lgkmcnt(0)')

g.lab('L_ROLE_Q')
g.vm=list(vm_pre)
e('s_lshl_b32 s50, s5, 10')
e('v_lshlrev_b32 v6, 4, v1')
g.vmem('x',f'buffer_load_dwordx4 v[8:11], v6, {SRD_X}, s50 offen')
e('v_lshrrev_b32 v6, 4, v1'); e('s_lshl_b32 s50, s3, 7'); e('v_add_u32 v6, s50, v6'); e('v_lshlrev_b32 v6, 13, v6')
e('v_and_b32 v7, 15, v1'); e('v_lshl_add_u32 v6, v7, 4, v6'); e('s_lshl_b32 s50, s4, 10'); e('v_add_u32 v6, s50, v6')
def wqload(i):
    t=i>>2; cb=i&3
    if cb==0: e(f's_mov_b32 s48, {t*32768}')
    g.vmem(('WQ',i), f'buffer_load_dwordx4 {vr(slot(i),4)}, v6, {SRD_WQ}, s48 offen offset:{cb*256}')
for i in range(32): wqload(i)
QACC=40; XA=56; QM=88
e('v_and_b32 v12, 1, v1'); e('v_lshlrev_b32 v12, 4, v12'); e('v_mov_b32 v13, 0xffff'); e('v_lshlrev_b32 v13, v12, v13')
e('v_bfe_u32 v12, v1, 1, 2')
for k in range(4):
    e(f'v_cmp_eq_u32 vcc, {k}, v12'); e('s_nop 1'); e(f'v_cndmask_b32 v{QM+k}, 0, v13, vcc')
g.wait('x')
layernorm()
e('v_lshrrev_b32 v27, 4, v1'); e('v_lshlrev_b32 v27, 9, v27'); e('s_lshl_b32 s50, s3, 7'); e('v_add_u32 v27, s50, v27')
for k in range(8):
    e(f'ds_read_b128 {vr(XA+4*k,4)}, v27 offset:{L_XNT+16*k}')
e('s_waitcnt lgkmcnt(0)')
for t in range(32):
    A=8 if (t&1)==0 else 12
    for k in range(4): e(f'v_and_b32 v{A+k}, v{XA+t}, v{QM+k}')
    g.wait(('WQ',4*t+3))
    for cb in range(4):
        i=4*t+cb
        C = '0' if t==0 else vr(QACC+4*cb,4)
        e(f'v_mfma_f32_16x16x32_bf16 {vr(QACC+4*cb,4)}, {vr(A,4)}, {vr(slot(i),4)}, {C}')
    for cb in range(4):
        i=4*t+cb+32
        if i<128: wqload(i)
        else: kload(i-128)
g.nop(8)
e('v_and_b32 v8, 15, v1'); e('v_lshlrev_b32 v8, 5, v8'); e('v_lshrrev_b32 v9, 4, v1'); e('v_lshl_add_u32 v8, v9, 4, v8')
e('s_lshl_b32 s50, s3, 11'); e('v_add_u32 v8, s50, v8')
e('s_mov_b32 exec_hi, 0')
for cb in range(4): e(f'ds_write_b128 v8, {vr(QACC+4*cb,4)} offset:{L_QP+cb*512}')
e('s_mov_b64 exec, -1')
e('s_waitcnt lgkmcnt(0)')
e('s_branch L_BAR1')

g.lab('L_ROLE_F')
g.vm=list(vm_pre)
addr_ff('v7')
g.vmem('clr',f'buffer_store_dwordx4 v[12:15], v7, {SRD_WS}, 0 offen sc0 sc1')
g.vmem('clr',f'buffer_store_dwordx4 v[12:15], v7, {SRD_WS}, 0 offen offset:2048 sc0 sc1')
e('s_lshl_b32 s50, s5, 10')
e('v_lshlrev_b32 v6, 4, v1')
g.vmem('x',f'buffer_load_dwordx4 v[8:11], v6, {SRD_X}, s50 offen')
e('v_lshrrev_b32 v6, 1, v1'); e('v_mul_u32_u24 v6, 3584, v6'); e('v_and_b32 v12, 1, v1'); e('v_lshl_add_u32 v6, v12, 4, v6')
e('s_lshl_b32 s50, s51, 5'); e('v_add_u32 v6, s50, v6')
for ld in range(16):
    e(f's_mov_b32 s48, {ld*114688}')
    g.vmem(('W1',ld), f'buffer_load_dwordx4 {vr(slot(ld),4)}, v6, {SRD_W1}, s48 offen')
e('v_lshlrev_b32 v6, 4, v1'); e('s_lshl_b32 s50, s51, 14')
for f in range(16):
    if f%4==0: e(f's_add_u32 s48, s50, {f*1024}')
    g.vmem(('W2',f), f'buffer_load_dwordx4 {vr(slot(16+f),4)}, v6, {SRD_W2}, s48 offen offset:{(f%4)*1024}')
g.wait('x')
layernorm()
e('v_bfe_u32 v27, v1, 1, 2'); e('v_lshlrev_b32 v27, 9, v27'); e('v_lshrrev_b32 v28, 3, v1'); e('v_lshl_add_u32 v27, v28, 2, v27')
for ld in range(16): e(f'ds_read_b32 v{56+ld}, v27 offset:{L_XNT+32*ld}')
e('s_waitcnt lgkmcnt(0)')
for k in range(8): e(f'v_mov_b32 v{40+k}, 0')
for ld in range(16):
    e(f'v_and_b32 v{56+ld}, 0xffff0000, v{56+ld}')
    g.wait(('W1',ld))
    sl=slot(ld)
    for k in range(4):
        e(f'v_lshlrev_b32 v8, 16, v{sl+k}'); e(f'v_and_b32 v9, 0xffff0000, v{sl+k}')
        e(f'v_fmac_f32 v{40+2*k}, v8, v{56+ld}'); e(f'v_fmac_f32 v{41+2*k}, v9, v{56+ld}')
for i in range(16): kload(i)
vs=[f'v{40+k}' for k in range(8)]; ts=[f'v{48+k}' for k in range(8)]
multi_red(vs,ts,['quad_perm:[2,3,0,1]','row_ror:4','row_ror:8'])
for k in range(8):
    bf16_round_f32(f'v{40+k}',f'v{40+k}'); e(f'v_max_f32 v{40+k}, 0, v{40+k}')
e('s_nop 0')
for k in range(8):
    e(f'v_readlane_b32 s{86+k}, v{40+k}, 0'); e(f'v_readlane_b32 s{94+k}, v{40+k}, 1')
for k in range(8): e(f'v_mov_b32 v{40+k}, 0')
for f in range(16):
    g.wait(('W2',f))
    sl=slot(16+f)
    for k in range(4):
        e(f'v_lshlrev_b32 v8, 16, v{sl+k}'); e(f'v_and_b32 v9, 0xffff0000, v{sl+k}')
        e(f'v_fmac_f32 v{40+2*k}, s{86+f}, v8'); e(f'v_fmac_f32 v{41+2*k}, s{86+f}, v9')
for i in range(16,32): kload(i)
for k in range(8): sanitize(f'v{40+k}')
g.vmem('ffp',f'buffer_store_dwordx4 v[40:43], v7, {SRD_WS}, 0 offen sc0 sc1')
g.vmem('ffp',f'buffer_store_dwordx4 v[44:47], v7, {SRD_WS}, 0 offen offset:2048 sc0 sc1')

g.lab('L_BAR1')
g.vm=[('K',i) for i in range(32)]
e('s_barrier')
e('v_cmp_eq_u32 vcc, 0, v0'); e('s_and_saveexec_b64 s[56:57], vcc')
e('v_mov_b32 v8, 1'); e('v_mov_b32 v9, 0')
e(f'buffer_atomic_add v8, v9, {SRD_DBG}, 0 offen sc1')
e('s_mov_b64 exec, s[56:57]')
e('v_lshlrev_b32 v8, 2, v0')
for k in range(4): e(f'ds_read_b32 v{10+k}, v8 offset:{L_QP+k*2048}')
e('s_waitcnt lgkmcnt(0)')
e('v_add_f32 v10, v10, v11'); e('v_add_f32 v12, v12, v13'); e('v_add_f32 v10, v10, v12')
e('v_cvt_pk_bf16_f32 v10, v10, v10')
e('v_lshlrev_b32 v8, 1, v0')
e(f'ds_write_b16 v8, v10 offset:{L_QB}')
e('s_waitcnt lgkmcnt(0)')
e('s_barrier')
e('v_bfe_u32 v8, v1, 2, 2'); e('v_lshlrev_b32 v8, 8, v8'); e('v_lshrrev_b32 v9, 4, v1'); e('v_lshl_add_u32 v8, v9, 4, v8')
for s_ in range(4): e(f'ds_read_b128 {vr(QOP+4*s_,4)}, v8 offset:{L_QB+64*s_}')
e('s_waitcnt lgkmcnt(0)')

g.c('K phase')
for t in range(16):
    g.wait(('K',4*t+3))
    for st in range(4):
        C='0' if st==0 else vr(S0+4*t,4)
        e(f'v_mfma_f32_16x16x32_bf16 {vr(S0+4*t,4)}, {vr(slot(4*t+st),4)}, {vr(QOP+4*st,4)}, {C}')
    for st in range(4):
        i=4*t+st+32
        if i<64: kload(i)
        else: vload(i-64)

g.c('wo prefetch + misc')
e('s_lshl_b32 s50, s4, 19'); e('s_lshl_b32 s53, s6, 15'); e('s_add_u32 s50, s50, s53')
e('v_lshlrev_b32 v6, 1, v0')
for r in range(32):
    if r%4==0: e(f's_add_u32 s53, s50, {r*1024}')
    dst=(QOP if r&1 else WO)+(r>>1)
    g.vmem(('WO',r), f'buffer_load_ushort v{dst}, v6, {SRD_WO}, s53 offen offset:{(r%4)*1024}')
e('v_mov_b32 v7, 0')
g.vmem('cnt', f'buffer_load_dword v248, v7, {SRD_DBG}, 0 offen sc0 sc1')
e('s_lshl_b32 s50, s5, 10'); e('s_lshl_b32 s53, s51, 3'); e('s_add_u32 s50, s50, s53')
g.vmem('xc', f'buffer_load_dwordx2 v[250:251], v7, {SRD_X}, s50 offen')

g.c('softmax')
g.nop(8)
e(f'v_max3_f32 v8, v{S0}, v{S0+1}, v{S0+2}'); e(f'v_max3_f32 v9, v{S0+3}, v{S0+4}, v{S0+5}')
k=6
while k<64:
    a=min(k+1,63)
    e(f'v_max3_f32 v8, v8, v{S0+k}, v{S0+a}')
    k+=2
    if k<64:
        a=min(k+1,63); e(f'v_max3_f32 v9, v9, v{S0+k}, v{S0+a}'); k+=2
e('v_max_f32 v8, v8, v9')
red_x16_32('v8','v9','v_max_f32')
e('v_mov_b32 v249, v8')
e('v_mul_f32 v10, s52, v8'); e('v_sub_f32 v10, 0, v10')
for k in range(64): e(f'v_fma_f32 v{S0+k}, v{S0+k}, s52, v10')
for k in range(64): e(f'v_exp_f32 v{S0+k}, v{S0+k}')
e('s_nop 0')
for a in range(4): e(f'v_add_f32 v{12+a}, v{S0+a}, v{S0+4+a}')
for k in range(8,64): e(f'v_add_f32 v{12+(k&3)}, v{12+(k&3)}, v{S0+k}')
e('v_add_f32 v12, v12, v13'); e('v_add_f32 v14, v14, v15'); e('v_add_f32 v12, v12, v14')
red_x16_32('v12','v13','v_add_f32')
e('v_mov_b32 v252, v12')
g.c('V phase')
AT=[8,10,12,14]
def prepA(c):
    A=AT[c&3]
    e(f'v_cvt_pk_bf16_f32 v{A+1}, v{S0+c}, v{S0+c}')
    e(f'v_and_b32 v{A}, v{A+1}, v4'); e(f'v_and_b32 v{A+1}, v{A+1}, v5')
prepA(0)
for c in range(64):
    if c+1<64: prepA(c+1)
    else: g.nop(2)
    g.wait(('V',c))
    A=AT[c&3]; sl=slot(c)
    C0='0' if c==0 else vr(OACC,4); C1='0' if c==0 else vr(OACC+4,4)
    e(f'v_mfma_f32_16x16x16_bf16 {vr(OACC,4)}, {vr(A,2)}, {vr(sl,2)}, {C0}')
    e(f'v_mfma_f32_16x16x16_bf16 {vr(OACC+4,4)}, {vr(A,2)}, {vr(sl+2,2)}, {C1}')
    if c+32<64: vload(c+32)
    if c==33:
        g.wait(('WO',31))
        for k in range(16): e(f'v_lshl_or_b32 v{WO+k}, v{QOP+k}, 16, v{WO+k}')

g.c('tail: WG combine')
e('v_mov_b32 v8, v249'); e('v_mov_b32 v9, v252')
e('v_bfe_u32 v10, v1, 2, 2'); e('v_lshlrev_b32 v10, 6, v10'); e('s_lshl_b32 s50, s3, 3'); e('v_add_u32 v10, s50, v10')
e('v_and_b32 v11, 0x33, v1'); e('v_cmp_eq_u32 vcc, 0, v11'); e('s_and_saveexec_b64 s[56:57], vcc')
e(f'ds_write_b64 v10, v[8:9] offset:{L_ST}')
e('s_mov_b64 exec, s[56:57]')
e('v_lshrrev_b32 v10, 4, v1'); e('v_lshlrev_b32 v10, 9, v10'); e('v_and_b32 v11, 15, v1'); e('v_lshl_add_u32 v10, v11, 5, v10')
e('s_lshl_b32 s50, s3, 11'); e('v_add_u32 v10, s50, v10')
g.nop(8)
e(f'ds_write_b128 v10, {vr(OACC,4)} offset:{L_OA}'); e(f'ds_write_b128 v10, {vr(OACC+4,4)} offset:{L_OA+16}')
e('s_waitcnt lgkmcnt(0)')
e('s_barrier')
e('v_lshlrev_b32 v10, 2, v0')
for w in range(8): e(f'ds_read_b32 v{16+w}, v10 offset:{L_OA+w*2048}')
e('v_lshrrev_b32 v11, 7, v0'); e('v_lshlrev_b32 v11, 6, v11')
for k in range(4): e(f'ds_read_b128 {vr(40+4*k,4)}, v11 offset:{L_ST+16*k}')
e('s_waitcnt lgkmcnt(0)')
e('v_max3_f32 v8, v40, v42, v44'); e('v_max3_f32 v8, v8, v46, v48'); e('v_max3_f32 v8, v8, v50, v52'); e('v_max_f32 v8, v8, v54')
for w in range(8):
    e(f'v_sub_f32 v{40+2*w}, v{40+2*w}, v8'); e(f'v_mul_f32 v{40+2*w}, s52, v{40+2*w}')
for w in range(8): e(f'v_exp_f32 v{40+2*w}, v{40+2*w}')
e('s_nop 0')
e('v_mul_f32 v9, v40, v41'); e('v_mul_f32 v12, v40, v16')
for w in range(1,8):
    e(f'v_fmac_f32 v9, v{40+2*w}, v{41+2*w}'); e(f'v_fmac_f32 v12, v{40+2*w}, v{16+w}')
sanitize('v8'); sanitize('v9'); sanitize('v12')
addr_l1('v10')
g.vmem('p1',f'buffer_store_dword v12, v10, {SRD_WS}, 0 offen sc0 sc1')
e('v_cmp_eq_u32 vcc, 0, v255'); e('s_and_saveexec_b64 s[56:57], vcc')
g.vmem('p1',f'buffer_store_dwordx2 v[8:9], v10, {SRD_WS}, 0 offen offset:128 sc0 sc1')
e('s_mov_b64 exec, s[56:57]')

g.c('L1 gather (wave 0)')
e('s_cmp_lg_u32 s3, 0'); e('s_cbranch_scc1 L_BAR4')
vm_save=list(g.vm)
g.wait('cnt')
e(f's_mov_b32 s54, {SPIN}')
g.lab('L_CNT')
e('s_nop 0'); e('v_readfirstlane_b32 s50, v248')
e('s_cmp_eq_u32 s50, 0x100'); e('s_cbranch_scc1 L_CNT_OK')
e('s_sub_u32 s54, s54, 1'); e('s_cmp_eq_u32 s54, 0'); e('s_cbranch_scc1 L_CNT_OK')
e('s_sleep 2')
e(f'buffer_load_dword v248, v7, {SRD_DBG}, 0 offen sc0 sc1'); e('s_waitcnt vmcnt(0)')
e('s_branch L_CNT')
g.lab('L_CNT_OK')
e('s_and_b32 s50, s2, 15'); e('s_lshl_b32 s50, s50, 16'); e('s_lshl_b32 s53, s6, 12'); e('s_add_u32 s50, s50, s53')
e('v_lshrrev_b32 v10, 2, v1'); e('v_lshlrev_b32 v10, 8, v10'); e('v_and_b32 v11, 3, v1')
e('v_lshlrev_b32 v12, 5, v11'); e('v_add_u32 v12, v12, v10')
e(f's_mov_b32 s54, {SPIN}')
g.lab('L_P1')
e(f'buffer_load_dwordx4 v[16:19], v12, {SRD_WS}, s50 offen sc0 sc1')
e(f'buffer_load_dwordx4 v[20:23], v12, {SRD_WS}, s50 offen offset:16 sc0 sc1')
e(f'buffer_load_dwordx2 v[24:25], v10, {SRD_WS}, s50 offen offset:128 sc0 sc1')
e('s_waitcnt vmcnt(0)')
e('v_max3_u32 v8, v16, v17, v18'); e('v_max3_u32 v8, v8, v19, v20'); e('v_max3_u32 v8, v8, v21, v22'); e('v_max3_u32 v8, v8, v23, v24'); e('v_max_u32 v8, v8, v25')
e('v_cmp_eq_u32 vcc, -1, v8')
e('s_cbranch_vccz L_P1_OK')
e('s_sub_u32 s54, s54, 1'); e('s_cmp_eq_u32 s54, 0'); e('s_cbranch_scc1 L_P1_OK')
e('s_sleep 1')
e('s_branch L_P1')
g.lab('L_P1_OK')
e('v_mov_b32 v8, v24')
multi_red(['v8'],['v9'],['row_ror:4','row_ror:8'],op='v_max_f32')
e('v_sub_f32 v9, v24, v8'); e('v_mul_f32 v9, s52, v9'); e('v_exp_f32 v9, v9'); e('s_nop 0')
e('v_mul_f32 v25, v25, v9')
for k in range(8): e(f'v_mul_f32 v{16+k}, v{16+k}, v9')
vs=[f'v{16+k}' for k in range(8)]+['v25']; ts=[f'v{40+k}' for k in range(9)]
multi_red(vs,ts,['row_ror:4','row_ror:8'])
e('v_rcp_f32 v25, v25'); e('s_nop 0')
for k in range(8): e(f'v_mul_f32 v{16+k}, v{16+k}, v25')
for k in range(4): e(f'v_cvt_pk_bf16_f32 v{26+k}, v{16+2*k}, v{17+2*k}')
e('v_and_b32 v11, 3, v1'); e('v_lshlrev_b32 v11, 4, v11')
e('s_mov_b64 exec, 15')
e(f'ds_write_b128 v11, v[26:29] offset:{L_OB}')
e('s_mov_b64 exec, -1')
e('s_waitcnt lgkmcnt(0)')
g.lab('L_BAR4')
g.vm=list(vm_save)
e('s_barrier')
e('v_mov_b32 v10, 0')
for k in range(4): e(f'ds_read_b128 {vr(16+4*k,4)}, v10 offset:{L_OB+16*k}')
g.wait(('WO',31))
e('s_waitcnt lgkmcnt(0)')
e('v_mov_b32 v8, 0'); e('v_mov_b32 v9, 0')
for k in range(16): e(f'v_dot2_f32_bf16 v{8+(k&1)}, v{WO+k}, v{16+k}, v{8+(k&1)}')
g.nop(3)
e('v_add_f32 v8, v8, v9')
sanitize('v8')
addr_l2('v10')
g.vmem('p2',f'buffer_store_dword v8, v10, {SRD_WS}, 0 offen sc0 sc1')
e('s_cmp_lg_u32 s3, 0'); e('s_cbranch_scc1 L_END')
g.c('L2 gather (wave 0)')
e('s_lshl_b32 s50, s5, 18'); e('s_lshl_b32 s53, s51, 11'); e('s_add_u32 s50, s50, s53')
e(f's_add_u32 s53, s50, 0x{WS_FF:x}'); e(f's_add_u32 s50, s50, 0x{WS_L2:x}')
e('v_lshlrev_b32 v10, 4, v1')
for k in range(28,32): e(f'v_mov_b32 v{k}, 0')
e(f's_mov_b32 s54, {SPIN}')
g.lab('L_P2')
e(f'buffer_load_dwordx4 v[16:19], v10, {SRD_WS}, s50 offen sc0 sc1')
e(f'buffer_load_dwordx4 v[20:23], v10, {SRD_WS}, s50 offen offset:1024 sc0 sc1')
e(f'buffer_load_dwordx4 v[24:27], v10, {SRD_WS}, s53 offen sc0 sc1')
e('s_mov_b32 exec_hi, 0xffff')
e(f'buffer_load_dwordx4 v[28:31], v10, {SRD_WS}, s53 offen offset:1024 sc0 sc1')
e('s_mov_b64 exec, -1')
e('s_waitcnt vmcnt(0)')
e('v_max3_u32 v8, v16, v17, v18')
for k in range(19,31,2): e(f'v_max3_u32 v8, v8, v{k}, v{k+1}')
e('v_max_u32 v8, v8, v31')
e('v_cmp_eq_u32 vcc, -1, v8')
e('s_cbranch_vccz L_P2_OK')
e('s_sub_u32 s54, s54, 1'); e('s_cmp_eq_u32 s54, 0'); e('s_cbranch_scc1 L_P2_OK')
e('s_sleep 1')
e('s_branch L_P2')
g.lab('L_P2_OK')
for k in range(4):
    e(f'v_add_f32 v{16+k}, v{16+k}, v{20+k}'); e(f'v_add_f32 v{24+k}, v{24+k}, v{28+k}')
vs=[f'v{16+k}' for k in range(4)]+[f'v{24+k}' for k in range(4)]; ts=[f'v{40+k}' for k in range(8)]
multi_red(vs,ts,['quad_perm:[1,0,3,2]','quad_perm:[2,3,0,1]','row_half_mirror','row_mirror'])
for k in range(4):
    bf16_round_f32(f'v{16+k}',f'v{16+k}'); bf16_round_f32(f'v{24+k}',f'v{24+k}')
for k in range(4):
    e(f'v_mul_f32 v{28+k}, 0x{f2u(-1.4426950408889634):08x}, v{24+k}')
for k in range(4): e(f'v_exp_f32 v{28+k}, v{28+k}')
e('s_nop 0')
for k in range(4): e(f'v_add_f32 v{28+k}, 1.0, v{28+k}')
for k in range(4): e(f'v_rcp_f32 v{28+k}, v{28+k}')
e('s_nop 0')
for k in range(4):
    e(f'v_mul_f32 v{24+k}, v{24+k}, v{28+k}'); bf16_round_f32(f'v{24+k}',f'v{24+k}')
    e(f'v_mul_f32 v{16+k}, v{16+k}, v{24+k}'); bf16_round_f32(f'v{16+k}',f'v{16+k}')
e('v_lshlrev_b32 v20, 16, v250'); e('v_and_b32 v21, 0xffff0000, v250'); e('v_lshlrev_b32 v22, 16, v251'); e('v_and_b32 v23, 0xffff0000, v251')
for k in range(4): e(f'v_add_f32 v{16+k}, v{16+k}, v{20+k}')
e('v_cvt_pk_bf16_f32 v8, v16, v17'); e('v_cvt_pk_bf16_f32 v9, v18, v19')
e('v_mov_b32 v10, 0')
e('s_lshl_b32 s50, s5, 10'); e('s_lshl_b32 s53, s51, 3'); e('s_add_u32 s50, s50, s53')
e('s_mov_b64 exec, 1')
e(f'buffer_store_dwordx2 v[8:9], v10, {SRD_OUT}, s50 offen')
g.lab('L_END')

body='\n'.join(g.L)
hdr=open(OUT+'.ref').read().split('\n')
out=[]
for ln in hdr:
    if ln.startswith('; @launch'):
        out.append(f'; @launch grid=(256,1,1) block=(512,1,1) lds={LDS_SZ}'); continue
    out.append(ln)
    if ln.startswith(NAME+'_kernel:'): break
txt='\n'.join(out)+'\n'+body+'\n'+f'''s_endpgm
.section .rodata,"a"
.p2align 6
.amdhsa_kernel {NAME}_kernel
  .amdhsa_next_free_vgpr 256
  .amdhsa_next_free_sgpr 102
  .amdhsa_accum_offset 256
  .amdhsa_group_segment_fixed_size 0
  .amdhsa_kernarg_size 88
  .amdhsa_user_sgpr_count 2
  .amdhsa_user_sgpr_kernarg_segment_ptr 1
  .amdhsa_system_sgpr_workgroup_id_x 1
.end_amdhsa_kernel
'''
open(OUT,'w').write(txt)
print('lines',len(g.L))
```
